```python
import torch

def _softmax(x, axis=-1):
    return torch.softmax(x, dim=axis)

def _gelu(x):
    return torch.nn.functional.gelu(x, approximate='tanh')

def _silu(x):
    return torch.nn.functional.silu(x)

def _sigmoid(x):
    return torch.sigmoid(x)

def _layernorm(x, axis=-1, eps=1e-05):
    m = x.mean(dim=axis, keepdim=True)
    v = x.var(dim=axis, keepdim=True, unbiased=False)
    return (x - m) / torch.sqrt(v + eps)

def _scatter_add(tgt, idx, src, axis=0):
    return tgt.clone().index_add_(axis, idx, src)

def _segment_sum(src, seg, n):
    out = torch.zeros((n,) + src.shape[1:], dtype=src.dtype)
    return out.index_add_(0, seg, src)

def _pad(x, pw):
    flat = tuple((v for pair in reversed(pw) for v in pair))
    return torch.nn.functional.pad(x, flat)
kernel_name = 'standalone__tree_speculative_verify_tree_attention_over_candidate_token_tree__sampling'

def setup_inputs():

    _w = lambda a: (lambda t: t.to(torch.bfloat16) if t.is_floating_point() else t)(torch.as_tensor(a))
    B, Hq, Hkv, T, C, D = (16, 32, 8, 8, 2048, 128)
    tree_mask = torch.zeros((B, T, T), dtype=float)
    for b in range(B):
        parent = torch.zeros(T, dtype=torch.int64)
        for i in range(1, T):
            parent[i] = int(torch.randint(0, i, (1,)).item())
        for i in range(T):
            j = i
            tree_mask[b, i, j] = 1.0
            while j > 0:
                j = parent[j]
                tree_mask[b, i, j] = 1.0
    return {'q': _w((lambda *s: torch.randn(*s, dtype=torch.bfloat16) * 0.8)(B, Hq, T, D)), 'k_cache': _w((lambda *s: torch.randn(*s, dtype=torch.bfloat16) * 0.8)(B, Hkv, C, D)), 'v_cache': _w((lambda *s: torch.randn(*s, dtype=torch.bfloat16) * 0.05)(B, Hkv, C, D)), 'k_tree': _w((lambda *s: torch.randn(*s, dtype=torch.bfloat16) * 0.8)(B, Hkv, T, D)), 'v_tree': _w((lambda *s: torch.randn(*s, dtype=torch.bfloat16) * 0.05)(B, Hkv, T, D)), 'tree_mask': _w(tree_mask)}

def reference(q, k_cache, v_cache, k_tree, v_tree, tree_mask):
    B, Hq, T, D = q.shape
    Hkv, C = (k_cache.shape[1], k_cache.shape[2])
    rep = Hq // Hkv
    kc = (lambda x, n, axis: torch.repeat_interleave(x, n, dim=axis))(k_cache, rep, axis=1)
    vc = (lambda x, n, axis: torch.repeat_interleave(x, n, dim=axis))(v_cache, rep, axis=1)
    kt = (lambda x, n, axis: torch.repeat_interleave(x, n, dim=axis))(k_tree, rep, axis=1)
    vt = (lambda x, n, axis: torch.repeat_interleave(x, n, dim=axis))(v_tree, rep, axis=1)
    k = torch.concatenate([kc, kt], axis=2)
    v = torch.concatenate([vc, vt], axis=2)
    scale = D ** (-0.5)
    scores = torch.einsum('bhqd,bhkd->bhqk', q, k) * scale
    ctx_mask = torch.ones((B, 1, T, C), dtype=scores.dtype)
    tm = tree_mask[:, None, :, :].clone()
    full_mask = torch.concatenate([ctx_mask, tm], axis=-1)
    scores = scores + (1.0 - full_mask) * -1000000000.0
    p = _softmax(scores, axis=-1)
    return torch.einsum('bhqk,bhkd->bhqd', p, v)
```

```python
import re

TRANS = ('v_exp_f32','v_log_f32','v_rcp_f32','v_rsq_f32','v_sqrt_f32','v_sin_f32','v_cos_f32','v_rcp_iflag_f32')

def regs_of(op):
    op = op.strip()
    op = op.lstrip('-')
    m = re.fullmatch(r'abs\((.*)\)', op)
    if m: op = m.group(1)
    m = re.fullmatch(r'\|(.*)\|', op)
    if m: op = m.group(1)
    m = re.fullmatch(r'([vsa])\[(\d+):(\d+)\]', op)
    if m: return {(m.group(1), i) for i in range(int(m.group(2)), int(m.group(3))+1)}
    m = re.fullmatch(r'([vsa])(\d+)', op)
    if m: return {(m.group(1), int(m.group(2)))}
    if op == 'vcc': return {('s','vcc_lo'),('s','vcc_hi')}
    if op in ('vcc_lo','vcc_hi'): return {('s',op)}
    if op == 'exec': return {('s','exec_lo'),('s','exec_hi')}
    if op in ('exec_lo','exec_hi'): return {('s',op)}
    if op == 'm0': return {('s','m0')}
    return set()

class Ins:
    def __init__(self, text):
        self.text = text
        t = text.split(';')[0].strip()
        parts = t.split(None, 1)
        self.op = parts[0]
        rest = parts[1] if len(parts) > 1 else ''
        ops = []; cur = ''; depth = 0
        for ch in rest:
            if ch in '[(': depth += 1
            if ch in '])': depth -= 1
            if ch == ',' and depth == 0:
                ops.append(cur.strip()); cur = ''
            else: cur += ch
        if cur.strip(): ops.append(cur.strip())
        self.mods = ''
        if ops:
            last = ops[-1].split(None, 1)
            ops[-1] = last[0]
            if len(last) > 1: self.mods = last[1]
        self.ops = ops
        op = self.op
        for suf in ('_e32','_e64','_dpp','_sdwa'):
            if op.endswith(suf): op = op[:-len(suf)]
        self.base = op
        self.dpp = self.op.endswith('_dpp') or 'row_' in self.mods or 'quad_perm' in self.mods
        self.kind = 'other'
        self.w = set(); self.r = set(); self.srcC = set(); self.srcAB = set()
        self.passes = 0
        self.lds_dma = False
        self.store_data = set()
        R = [regs_of(o) for o in ops]
        if op.startswith('v_mfma'):
            self.kind = 'mfma'
            self.w = R[0]; self.srcAB = R[1] | R[2]; self.srcC = R[3]; self.r = self.srcAB | self.srcC
            if '32x32x16' in op or '32x32x8' in op: self.passes = 8
            elif '16x16x32' in op or '16x16x16' in op: self.passes = 4
            else: raise ValueError(op)
        elif op.startswith('v_'):
            self.kind = 'valu'
            if op.startswith('v_permlane') and 'swap' in op:
                self.w = R[0] | R[1]; self.r = R[0] | R[1]
            elif op.startswith('v_cmp'):
                self.w = R[0]; self.r = set().union(*R[1:])
            elif op in ('v_add_co_u32','v_sub_co_u32','v_addc_co_u32','v_subb_co_u32'):
                self.w = R[0] | R[1]; self.r = set().union(*R[2:])
            elif op == 'v_nop':
                pass
            else:
                self.w = R[0]; self.r = set().union(*R[1:]) if len(R) > 1 else set()
                if op in ('v_fmac_f32','v_pk_fmac_f16','v_writelane_b32') or self.dpp: self.r |= R[0]
                if op == 'v_cndmask_b32' and len(ops) == 3: self.r |= regs_of('vcc')
        elif op.startswith('ds_'):
            self.kind = 'ds'
            if op.startswith('ds_read') or op.startswith('ds_bpermute') or op.startswith('ds_permute') or op.startswith('ds_swizzle') or '_rtn' in op:
                self.w = R[0]; self.r = set().union(*R[1:])
            else:
                self.r = set().union(*R)
        elif op.startswith('buffer_') or op.startswith('global_'):
            self.kind = 'vmem'
            mods = ' ' + self.mods + ' '
            if op.startswith('buffer_load') and ' lds ' in mods:
                self.lds_dma = True; self.r = set().union(*R) | {('s','m0')}
            elif op.startswith('global_load_lds'):
                self.lds_dma = True; self.r = set().union(*R) | {('s','m0')}
            elif '_load' in op:
                self.w = R[0]; self.r = set().union(*R[1:])
            elif op.startswith('buffer_store'):
                self.r = set().union(*R)
                if 'x3' in op or 'x4' in op: self.store_data = R[0]
            elif op.startswith('global_store'):
                self.r = set().union(*R)
                if 'x3' in op or 'x4' in op: self.store_data = R[1]
            elif op.startswith('buffer_atomic'):
                self.r = set().union(*R)
                if ' sc0 ' in mods: self.w = R[0]
            elif op.startswith('global_atomic'):
                if ' sc0 ' in mods:
                    self.w = R[0]; self.r = set().union(*R[1:])
                else: self.r = set().union(*R)
            elif op in ('buffer_inv','buffer_wbl2'):
                pass
            else: raise ValueError(op)
        elif op.startswith('s_'):
            self.kind = 'salu'
            if op.startswith('s_cmp') or op in ('s_waitcnt','s_barrier','s_nop','s_branch','s_endpgm','s_sleep','s_setprio','s_setpc_b64') or op.startswith('s_cbranch'):
                self.r = set().union(*R) if R else set()
            else:
                self.w = R[0] if R else set(); self.r = set().union(*R[1:]) if len(R) > 1 else set()
                if 'saveexec' in op: self.w |= regs_of('exec')
        else:
            raise ValueError('unknown op ' + text)
        self.trans = op in TRANS
        self.states = 1
        if op == 's_nop': self.states = int(ops[0], 0) + 1

def vonly(s): return {x for x in s if x[0] in 'va'}
def sonly(s): return {x for x in s if x[0] == 's'}

def need(prod, cons):
    n = 0
    if prod.kind == 'valu':
        pw = vonly(prod.w)
        if pw:
            if cons.kind == 'mfma' and pw & cons.r: n = max(n, 2)
            if cons.kind == 'valu':
                if cons.base.startswith('v_permlane') and pw & cons.r: n = max(n, 2)
                if cons.dpp and pw & cons.r: n = max(n, 2)
                if cons.base in ('v_readlane_b32','v_readfirstlane_b32') and pw & cons.r: n = max(n, 1)
                if prod.trans and not cons.trans and pw & cons.r: n = max(n, 1)
        ps = sonly(prod.w)
        if ps:
            if cons.kind == 'valu' and ps & cons.r:
                n = max(n, 4 if cons.base in ('v_readlane_b32','v_writelane_b32') else 2)
            if cons.kind == 'vmem' and ps & cons.r: n = max(n, 5)
            if cons.kind == 'salu' and ps & cons.r: n = max(n, 1)
            if cons.kind == 'salu' and cons.base in ('s_cbranch_vccz','s_cbranch_vccnz') and (ps & regs_of('vcc')): n = max(n, 1)
    if prod.kind == 'mfma':
        big = {4: 8, 8: 12}[prod.passes]
        ovl = {4: 6, 8: 10}[prod.passes]
        war = {4: 3, 8: 7}[prod.passes]
        if cons.kind == 'mfma':
            if prod.w & cons.srcAB: n = max(n, big)
            if prod.w & cons.srcC and not (prod.w == cons.srcC and prod.passes == cons.passes): n = max(n, ovl)
            if prod.w & cons.w and not (prod.w == cons.srcC): n = max(n, ovl)
        elif cons.kind in ('valu','ds','vmem'):
            if prod.w & (cons.r | cons.w): n = max(n, big)
            if cons.kind == 'valu' and prod.srcC & cons.w: n = max(n, war)
    if prod.kind == 'salu':
        if ('s','m0') in prod.w and cons.lds_dma: n = max(n, 1)
    if prod.store_data:
        if prod.store_data & cons.w: n = max(n, 2)
    return n

MAXW = 13

class Asm:
    def __init__(self):
        self.items = []
    def I(self, text):
        for line in text.strip().split('\n'):
            line = line.strip()
            if not line: continue
            if line.startswith(';'): self.items.append(('c', line)); continue
            if line.endswith(':'): self.items.append(('l', line[:-1])); continue
            if line.startswith('.'): self.items.append(('c', line)); continue
            self.items.append(('i', Ins(line)))
    def L(self, name): self.items.append(('l', name))
    def C(self, text): self.items.append(('c', '; ' + text))

    def pad(self):
        items = self.items
        pads = [0] * len(items)
        label_in = {}
        changed = True
        it = 0
        while changed:
            it += 1
            assert it < 50
            changed = False
            state = []
            dead = False
            for idx, (k, x) in enumerate(items):
                if k == 'l':
                    inc = label_in.get(x, [])
                    if dead: state = list(inc)
                    else: state = state + inc
                    dead = False
                    continue
                if k != 'i': continue
                req = 0
                for p, age in state:
                    n = need(p, x)
                    if n - age > req: req = n - age
                if req > pads[idx]:
                    pads[idx] = req; changed = True
                adv = pads[idx] + x.states
                state = [(p, a + adv) for p, a in state if a + adv < MAXW]
                state.append((x, 0))
                if x.base == 's_branch' or x.base.startswith('s_cbranch'):
                    tgt = x.ops[0]
                    old = label_in.get(tgt, [])
                    d = {id(p): (p, a) for p, a in old}
                    ch = False
                    for p, a in state:
                        if id(p) not in d or d[id(p)][1] > a:
                            d[id(p)] = (p, a); ch = True
                    if ch:
                        label_in[tgt] = list(d.values()); changed = True
                    if x.base == 's_branch': dead = True; state = []
                if x.base == 's_endpgm': dead = True; state = []
        out = []
        for idx, (k, x) in enumerate(items):
            if k == 'i':
                n = pads[idx]
                while n > 0:
                    m = min(n, 16)
                    out.append('    s_nop %d' % (m - 1)); n -= m
                out.append('    ' + x.text)
            elif k == 'l': out.append(x + ':')
            else: out.append('    ' + x if x.startswith(';') else x)
        return '\n'.join(out) + '\n'
```

```python
import sys, struct
from asmlib import Asm

NAME = 'standalone__tree_speculative_verify_tree_attention_over_candidate_token_tree__sampling'
HDR = open('cdna_kernels/%s.s.ref' % NAME).read().split('; Override launch')[0]

def f32(x): return '0x%08x' % struct.unpack('<I', struct.pack('<f', x))[0]

def gen(NW=8, KPOL='nt', VPOL='nt'):
    NWG = 128
    T = 64 // NW
    LDS_ML = NW * 16384
    LDS_TV = LDS_ML + 2048
    LDS = LDS_TV + 4096
    C = 0.08838834764831845 * 1.4426950408889634
    a = Asm(); I = a.I
    Q = lambda qg, s: 32 + (qg*4+s)*4
    O = lambda qg, i: 64 + (qg*8+i)*4
    KF = lambda t, s: 128 + (t*4+s)*4
    VF = lambda i: 160 + i*4
    S = lambda t, qg: 192 + (t*2+qg)*4
    P = lambda qg: 208 + qg*4
    r4 = lambda b: 'v[%d:%d]' % (b, b+3)
    r2 = lambda b: 'v[%d:%d]' % (b, b+1)
    vLANE, vG, vN = 1, 2, 3
    vKOFF = [4,5,6,7]; vVOFF = [8,9]
    vKA = [10,11,12,13]; vVA = [14,15,16,17,18,19,20,21]
    vM = [22,23]; vMC = [24,25]; vL = [26,27]; vAL = [28,29]
    vT = [216+i for i in range(16)]
    vMSK = [232,233,234,235]
    sK, sV, sQ, sO, sKT, sVT, sMK = 24, 28, 32, 36, 40, 44, 48
    sW, sI, sKOFF, sVOFF, sLB, sC, sT0, sT1 = 52, 53, 54, 55, 56, 57, 58, 59
    srd = lambda b: 's[%d:%d]' % (b, b+3)

    I('s_cmp_ge_u32 s2, %d' % NWG)
    I('s_cbranch_scc1 L_end')
    I('s_load_dwordx16 s[4:19], s[0:1], 0')
    I('v_lshrrev_b32 v%d, 6, v0' % vT[0])
    I('v_and_b32 v%d, 63, v0' % vLANE)
    I('v_readfirstlane_b32 s%d, v%d' % (sW, vT[0]))
    I('v_lshrrev_b32 v%d, 4, v%d' % (vG, vLANE))
    I('v_and_b32 v%d, 15, v%d' % (vN, vLANE))
    for j in range(4):
        I('v_add_u32 v%d, %d, v%d' % (vT[0], 4*j, vG))
        I('v_xor_b32 v%d, v%d, v%d' % (vT[0], vT[0], vN))
        I('v_lshlrev_b32 v%d, 4, v%d' % (vT[0], vT[0]))
        I('v_lshl_add_u32 v%d, v%d, 8, v%d' % (vKOFF[j], vG, vT[0]))
    for j in range(2):
        I('v_add_u32 v%d, %d, v%d' % (vT[0], 4*j, vG))
        I('v_lshlrev_b32 v%d, 1, v%d' % (vT[0], vT[0]))
        I('v_xor_b32 v%d, v%d, v%d' % (vT[0], vT[0], vN))
        I('v_lshlrev_b32 v%d, 4, v%d' % (vT[0], vT[0]))
        I('v_lshl_add_u32 v%d, v%d, 8, v%d' % (vVOFF[j], vG, vT[0]))
    I('s_lshl_b32 s%d, s%d, 14' % (sLB, sW))
    I('s_lshl_b32 s%d, s%d, 13' % (sKOFF, sW))
    I('s_mov_b32 s%d, s%d' % (sVOFF, sKOFF))
    I('s_mov_b32 s%d, %s' % (sC, f32(C)))
    I('s_waitcnt lgkmcnt(0)')
    def mk(s, plo, shift, nrec):
        I('s_lshl_b32 s%d, s2, %d' % (sT0, shift))
        I('s_add_u32 s%d, s%d, s%d' % (s, plo, sT0))
        I('s_addc_u32 s%d, s%d, 0' % (s+1, plo+1))
        I('s_mov_b32 s%d, %d' % (s+2, nrec))
        I('s_mov_b32 s%d, 0x20000' % (s+3))
    mk(sK, 6, 19, 524288)
    mk(sV, 8, 19, 524288)
    mk(sQ, 4, 13, 8192)
    mk(sO, 16, 13, 8192)
    mk(sKT, 10, 11, 2048)
    mk(sVT, 12, 11, 2048)
    I('s_lshr_b32 s%d, s2, 3' % sT0)
    I('s_lshl_b32 s%d, s%d, 7' % (sT0, sT0))
    I('s_add_u32 s%d, s14, s%d' % (sMK, sT0))
    I('s_addc_u32 s%d, s15, 0' % (sMK+1))
    I('s_mov_b32 s%d, 128' % (sMK+2))
    I('s_mov_b32 s%d, 0x20000' % (sMK+3))

    I('v_lshlrev_b32 v%d, 4, v%d' % (vT[1], vG))
    I('v_lshl_add_u32 v%d, v%d, 8, v%d' % (vT[1], vN, vT[1]))
    I('v_add_u32 v%d, 4096, v%d' % (vT[2], vT[1]))
    for qg in range(2):
        for s in range(4):
            I('buffer_load_dwordx4 %s, v%d, %s, 0 offen offset:%d' % (r4(Q(qg,s)), vT[1+qg], srd(sQ), s*64))
    I('s_cmp_lg_u32 s%d, 0' % sW)
    I('s_cbranch_scc1 L_notree_ld')
    for s in range(4):
        I('buffer_load_dwordx4 %s, v%d, %s, 0 offen offset:%d' % (r4(KF(0,s)), vT[1], srd(sKT), s*64))
    I('v_and_b32 v%d, 7, v%d' % (vT[3], vN))
    I('v_and_b32 v%d, 1, v%d' % (vT[4], vG))
    I('v_lshlrev_b32 v%d, 3, v%d' % (vT[4], vT[4]))
    I('v_lshl_add_u32 v%d, v%d, 4, v%d' % (vT[3], vT[3], vT[4]))
    I('buffer_load_dwordx2 %s, v%d, %s, 0 offen' % (r2(vMSK[0]), vT[3], srd(sMK)))
    I('s_mov_b32 m0, %d' % LDS_TV)
    for j in range(4):
        I('buffer_load_dwordx4 v%d, %s, 0 offen offset:%d lds' % (vVOFF[j&1], srd(sVT), j*1024))
    I('L_notree_ld:')

    def dmaK():
        I('s_mov_b32 m0, s%d' % sLB)
        for j in range(4):
            I('buffer_load_dwordx4 v%d, %s, s%d offen offset:%d %s lds' % (vKOFF[j], srd(sK), sKOFF, j*1024, KPOL))
        I('s_add_u32 m0, s%d, 4096' % sLB)
        I('s_add_u32 s%d, s%d, 4096' % (sT0, sKOFF))
        for j in range(4):
            I('buffer_load_dwordx4 v%d, %s, s%d offen offset:%d %s lds' % (vKOFF[j], srd(sK), sT0, j*1024, KPOL))
        I('s_add_u32 s%d, s%d, %d' % (sKOFF, sKOFF, NW*8192))
    def dmaV():
        I('s_add_u32 m0, s%d, 8192' % sLB)
        for j in range(4):
            I('buffer_load_dwordx4 v%d, %s, s%d offen offset:%d %s lds' % (vVOFF[j&1], srd(sV), sVOFF, j*1024, VPOL))
        I('s_add_u32 m0, s%d, 12288' % sLB)
        I('s_add_u32 s%d, s%d, 4096' % (sT0, sVOFF))
        for j in range(4):
            I('buffer_load_dwordx4 v%d, %s, s%d offen offset:%d %s lds' % (vVOFF[j&1], srd(sV), sT0, j*1024, VPOL))
        I('s_add_u32 s%d, s%d, %d' % (sVOFF, sVOFF, NW*8192))
    dmaK(); dmaV()

    I('v_xor_b32 v%d, v%d, v%d' % (vT[0], vG, vN))
    I('v_lshlrev_b32 v%d, 4, v%d' % (vT[0], vT[0]))
    I('v_lshl_add_u32 v%d, v%d, 8, v%d' % (vT[0], vN, vT[0]))
    I('v_add_u32 v%d, s%d, v%d' % (vKA[0], sLB, vT[0]))
    for s in range(1,4):
        I('v_xor_b32 v%d, %d, v%d' % (vKA[s], s*64, vKA[0]))
    I('v_lshrrev_b32 v%d, 2, v%d' % (vT[0], vN))
    I('v_lshl_add_u32 v%d, v%d, 2, v%d' % (vT[0], vG, vT[0]))
    I('v_and_b32 v%d, 7, v%d' % (vT[3], vT[0]))
    I('v_lshlrev_b32 v%d, 5, v%d' % (vT[3], vT[3]))
    I('v_lshl_add_u32 v%d, v%d, 8, v%d' % (vT[0], vT[0], vT[3]))
    I('v_and_b32 v%d, 3, v%d' % (vT[3], vN))
    I('v_lshl_add_u32 v%d, v%d, 3, v%d' % (vT[0], vT[3], vT[0]))
    I('v_add_u32 v%d, s%d, v%d' % (vVA[0], sLB, vT[0]))
    I('v_add_u32 v%d, 8192, v%d' % (vVA[0], vVA[0]))
    for i in range(1,8):
        I('v_xor_b32 v%d, %d, v%d' % (vVA[i], i*32, vVA[0]))
    I('v_add_u32 v%d, %d, v%d' % (vT[5], LDS_TV, vT[0]))
    for qg in range(2):
        I('v_mov_b32 v%d, %s' % (vM[qg], f32(-1e30)))
        I('v_mov_b32 v%d, %s' % (vMC[qg], f32(-1e30*C)))
        I('v_mov_b32 v%d, 0' % vL[qg])
    for r in range(64):
        I('v_mov_b32 v%d, 0' % (64+r))
    I('s_mov_b32 s%d, 0' % sI)

    def crossmax(m0, m1, t0, t1):
        I('v_permlane32_swap_b32 v%d, v%d' % (m0, m1))
        I('v_max_f32 v%d, v%d, v%d' % (t0, m0, m1))
        I('v_mov_b32 v%d, v%d' % (t1, t0))
        I('v_permlane16_swap_b32 v%d, v%d' % (t0, t1))
        I('v_max_f32 v%d, v%d, v%d' % (m0, t0, t1))
        I('v_mov_b32 v%d, v%d' % (m1, m0))
        I('v_permlane32_swap_b32 v%d, v%d' % (m0, m1))

    def softmax(ts):
        for qg in range(2):
            vals = [S(t,qg)+r for t in ts for r in range(4)] + [vM[qg]]
            acc = vals[0]; rest = vals[1:]
            first = True
            while rest:
                if len(rest) >= 2:
                    I('v_max3_f32 v%d, v%d, v%d, v%d' % (vT[qg], acc, rest[0], rest[1])); rest = rest[2:]
                else:
                    I('v_max_f32 v%d, v%d, v%d' % (vT[qg], acc, rest[0])); rest = rest[1:]
                acc = vT[qg]
        crossmax(vT[0], vT[1], vT[2], vT[3])
        for qg in range(2):
            I('v_mov_b32 v%d, v%d' % (vM[qg], vT[qg]))
            I('v_mul_f32 v%d, s%d, v%d' % (vT[2+qg], sC, vT[qg]))
            I('v_sub_f32 v%d, v%d, v%d' % (vAL[qg], vMC[qg], vT[2+qg]))
            I('v_mov_b32 v%d, v%d' % (vMC[qg], vT[2+qg]))
            I('v_exp_f32 v%d, v%d' % (vAL[qg], vAL[qg]))
        for qg in range(2):
            for t in ts:
                for r in range(4):
                    x = S(t,qg)+r
                    I('v_fma_f32 v%d, v%d, s%d, -v%d' % (x, x, sC, vMC[qg]))
            for t in ts:
                for r in range(4):
                    x = S(t,qg)+r
                    I('v_exp_f32 v%d, v%d' % (x, x))
        for qg in range(2):
            I('v_mul_f32 v%d, v%d, v%d' % (vL[qg], vL[qg], vAL[qg]))
        for t in ts:
            for r in range(4):
                for qg in range(2):
                    I('v_add_f32 v%d, v%d, v%d' % (vL[qg], vL[qg], S(t,qg)+r))
    def cvtP(ts):
        for qg in range(2):
            for t in ts:
                for h in range(2):
                    I('v_cvt_pk_bf16_f32 v%d, v%d, v%d' % (P(qg)+t*2+h, S(t,qg)+2*h, S(t,qg)+2*h+1))
    def rescaleO():
        for qg in range(2):
            for r in range(0, 32, 2):
                b = O(qg,0)+r
                I('v_pk_mul_f32 v[%d:%d], v[%d:%d], v[%d:%d] op_sel:[0,%d] op_sel_hi:[1,%d]' % (b,b+1,b,b+1,vAL[0],vAL[1],qg,qg))

    I('s_cmp_lg_u32 s%d, 0' % sW)
    I('s_cbranch_scc1 L_loop')
    I('s_waitcnt vmcnt(16)')
    for qg in range(2):
        for s in range(4):
            I('v_mfma_f32_16x16x32_bf16 %s, %s, %s, %s' % (r4(S(0,qg)), r4(KF(0,s)), r4(Q(qg,s)), '0' if s == 0 else r4(S(0,qg))))
    BIG = -1e9 / 0.08838834764831845
    I('v_lshlrev_b32 v%d, 16, v%d' % (vT[8], vMSK[0]))
    I('v_and_b32 v%d, 0xffff0000, v%d' % (vT[9], vMSK[0]))
    I('v_lshlrev_b32 v%d, 16, v%d' % (vT[10], vMSK[1]))
    I('v_and_b32 v%d, 0xffff0000, v%d' % (vT[11], vMSK[1]))
    I('s_mov_b32 s%d, %s' % (sT0, f32(BIG)))
    I('v_mov_b32 v%d, %s' % (vT[12], f32(-1e30)))
    I('v_cmp_gt_u32 vcc, 2, v%d' % vG)
    for r in range(4):
        I('v_sub_f32 v%d, 1.0, v%d' % (vT[8+r], vT[8+r]))
        I('v_mul_f32 v%d, s%d, v%d' % (vT[8+r], sT0, vT[8+r]))
        I('v_cndmask_b32 v%d, v%d, v%d, vcc' % (vT[8+r], vT[12], vT[8+r]))
    for qg in range(2):
        for r in range(4):
            I('v_add_f32 v%d, v%d, v%d' % (S(0,qg)+r, S(0,qg)+r, vT[8+r]))
    for i in range(8):
        I('v_xor_b32 v%d, %d, v%d' % (vT[6], i*32, vT[5]))
        I('ds_read_b64_tr_b16 %s, v%d' % (r2(VF(i)), vT[6]))
    softmax([0])
    cvtP([0])
    I('s_waitcnt lgkmcnt(0)')
    for qg in range(2):
        for i in range(8):
            I('v_mfma_f32_16x16x16_bf16 %s, %s, %s, %s' % (r4(O(qg,i)), r2(VF(i)), r2(P(qg)), r4(O(qg,i))))

    I('L_loop:')
    I('s_waitcnt vmcnt(8)')
    for t in range(2):
        for s in range(4):
            I('ds_read_b128 %s, v%d offset:%d' % (r4(KF(t,s)), vKA[s], t*4096))
    I('s_waitcnt lgkmcnt(0)')
    dmaK()
    for s in range(4):
        for t in range(2):
            for qg in range(2):
                I('v_mfma_f32_16x16x32_bf16 %s, %s, %s, %s' % (r4(S(t,qg)), r4(KF(t,s)), r4(Q(qg,s)), '0' if s == 0 else r4(S(t,qg))))
    softmax([0,1])
    I('s_cmp_eq_u32 s%d, %d' % (sI, T-1))
    I('s_cbranch_scc1 L_exch')
    I('L_back:')
    cvtP([0,1])
    rescaleO()
    I('s_waitcnt vmcnt(8)')
    for i in range(8):
        I('ds_read_b64_tr_b16 %s, v%d' % (r2(VF(i)), vVA[i]))
        I('ds_read_b64_tr_b16 %s, v%d offset:4096' % (r2(VF(i)+2), vVA[i]))
    I('s_waitcnt lgkmcnt(0)')
    dmaV()
    for i in range(8):
        for qg in range(2):
            I('v_mfma_f32_16x16x32_bf16 %s, %s, %s, %s' % (r4(O(qg,i)), r4(VF(i)), r4(P(qg)), r4(O(qg,i))))
    I('s_add_u32 s%d, s%d, 1' % (sI, sI))
    I('s_cmp_lt_u32 s%d, %d' % (sI, T))
    I('s_cbranch_scc1 L_loop')

    I('v_and_b32 v%d, 7, v%d' % (vT[0], vN))
    I('v_xor_b32 v%d, v%d, v%d' % (vT[0], vT[0], vG))
    I('v_lshlrev_b32 v%d, 4, v%d' % (vT[0], vT[0]))
    I('v_lshl_add_u32 v%d, v%d, 9, v%d' % (vT[0], vN, vT[0]))
    I('v_add_u32 v%d, s%d, v%d' % (vT[0], sLB, vT[0]))
    I('v_xor_b32 v%d, 64, v%d' % (vT[1], vT[0]))
    I('s_waitcnt vmcnt(0)')
    for qg in range(2):
        for i in range(8):
            I('ds_write_b128 v%d, %s offset:%d' % (vT[i&1], r4(O(qg,i)), qg*8192 + (i>>1)*128))
    RP = 32 // NW
    I('s_mul_i32 s%d, s%d, %d' % (sT0, sW, RP))
    I('v_add_u32 v%d, s%d, v%d' % (vT[2], sT0, vG))
    I('s_waitcnt lgkmcnt(0)')
    I('s_barrier')
    for ps in range(RP // 4):
        if ps: I('v_add_u32 v%d, 4, v%d' % (vT[2], vT[2]))
        I('v_and_b32 v%d, 7, v%d' % (vT[3], vT[2]))
        I('v_lshlrev_b32 v%d, 1, v%d' % (vT[4], vN))
        I('v_xor_b32 v%d, v%d, v%d' % (vT[3], vT[3], vT[4]))
        I('v_lshlrev_b32 v%d, 4, v%d' % (vT[3], vT[3]))
        I('v_lshl_add_u32 v%d, v%d, 9, v%d' % (vT[3], vT[2], vT[3]))
        I('v_xor_b32 v%d, 16, v%d' % (vT[4], vT[3]))
        I('v_add_u32 v%d, 65536, v%d' % (vT[5], vT[3]))
        I('v_add_u32 v%d, 65536, v%d' % (vT[6], vT[4]))
        for w in range(NW):
            for e in range(2):
                I('ds_read_b128 %s, v%d offset:%d' % (r4(64 + (w*2+e)*4), vT[3+e+2*(w//4)], (w%4)*16384))
        I('s_waitcnt lgkmcnt(0)')
        for w in range(1, NW):
            for e in range(8):
                I('v_add_f32 v%d, v%d, v%d' % (64+e, 64+e, 64+w*8+e))
        for h in range(4):
            I('v_cvt_pk_bf16_f32 v%d, v%d, v%d' % (128+h, 64+2*h, 64+2*h+1))
        I('v_lshlrev_b32 v%d, 4, v%d' % (vT[3], vN))
        I('v_lshl_add_u32 v%d, v%d, 8, v%d' % (vT[3], vT[2], vT[3]))
        I('buffer_store_dwordx4 v[128:131], v%d, %s, 0 offen' % (vT[3], srd(sO)))
    I('s_endpgm')

    I('L_exch:')
    I('v_permlane32_swap_b32 v%d, v%d' % (vL[0], vL[1]))
    I('v_add_f32 v%d, v%d, v%d' % (vT[0], vL[0], vL[1]))
    I('v_mov_b32 v%d, v%d' % (vT[1], vT[0]))
    I('v_permlane16_swap_b32 v%d, v%d' % (vT[0], vT[1]))
    I('v_add_f32 v%d, v%d, v%d' % (vT[3], vT[0], vT[1]))
    I('v_cmp_gt_u32 vcc, 32, v%d' % vLANE)
    I('v_cndmask_b32 v%d, v%d, v%d, vcc' % (vT[2], vMC[1], vMC[0]))
    I('v_lshrrev_b32 v%d, 5, v%d' % (vT[4], vLANE))
    I('v_lshl_add_u32 v%d, v%d, 4, v%d' % (vT[4], vT[4], vN))
    I('v_lshlrev_b32 v%d, 3, v%d' % (vT[4], vT[4]))
    I('s_lshl_b32 s%d, s%d, 8' % (sT0, sW))
    I('s_add_u32 s%d, s%d, %d' % (sT0, sT0, LDS_ML))
    I('v_add_u32 v%d, s%d, v%d' % (vT[5], sT0, vT[4]))
    I('ds_write_b64 v%d, %s' % (vT[5], r2(vT[2])))
    I('v_add_u32 v%d, %d, v%d' % (vT[4], LDS_ML, vT[4]))
    I('s_waitcnt lgkmcnt(0)')
    I('s_barrier')
    for w in range(NW):
        I('ds_read_b64 %s, v%d offset:%d' % (r2(128+2*w), vT[4], w*256))
    I('s_waitcnt lgkmcnt(0)')
    I('v_mov_b32 v%d, v128' % vT[0])
    for w in range(1, NW):
        I('v_max_f32 v%d, v%d, v%d' % (vT[0], vT[0], 128+2*w))
    for w in range(NW):
        I('v_sub_f32 v%d, v%d, v%d' % (128+2*w, 128+2*w, vT[0]))
        I('v_exp_f32 v%d, v%d' % (128+2*w, 128+2*w))
    I('v_mul_f32 v%d, v128, v129' % vT[1])
    for w in range(1, NW):
        I('v_fmac_f32 v%d, v%d, v%d' % (vT[1], 128+2*w, 129+2*w))
    I('v_rcp_f32 v%d, v%d' % (vT[1], vT[1]))
    I('v_sub_f32 v%d, v%d, v%d' % (vT[2], vT[2], vT[0]))
    I('v_exp_f32 v%d, v%d' % (vT[2], vT[2]))
    I('v_mul_f32 v%d, v%d, v%d' % (vT[2], vT[2], vT[1]))
    I('v_mov_b32 v%d, v%d' % (vT[3], vT[2]))
    I('v_permlane32_swap_b32 v%d, v%d' % (vT[2], vT[3]))
    for qg in range(2):
        I('v_mul_f32 v%d, v%d, v%d' % (vAL[qg], vAL[qg], vT[2+qg]))
        for t in range(2):
            for r in range(4):
                I('v_mul_f32 v%d, v%d, v%d' % (S(t,qg)+r, S(t,qg)+r, vT[2+qg]))
    I('s_branch L_back')
    I('L_end:')
    I('s_endpgm')

    body = a.pad()
    out = HDR + '; @launch grid=(%d,1,1) block=(%d,1,1) lds=%d\n' % (NWG, NW*64, LDS)
    out += '.amdgcn_target "amdgcn-amd-amdhsa--gfx950"\n.text\n.globl %s_kernel\n.p2align 8\n.type %s_kernel,@function\n%s_kernel:\n' % (NAME, NAME, NAME)
    out += body
    out += '''.section .rodata,"a"
.p2align 6
.amdhsa_kernel %s_kernel
  .amdhsa_next_free_vgpr 240
  .amdhsa_next_free_sgpr 64
  .amdhsa_accum_offset 240
  .amdhsa_group_segment_fixed_size 0
  .amdhsa_kernarg_size 72
  .amdhsa_user_sgpr_count 2
  .amdhsa_user_sgpr_kernarg_segment_ptr 1
  .amdhsa_system_sgpr_workgroup_id_x 1
.end_amdhsa_kernel
''' % NAME
    return out

if __name__ == '__main__':
    import argparse
    ap = argparse.ArgumentParser()
    ap.add_argument('-o', default='cdna_kernels/%s.s' % NAME)
    ap.add_argument('--nw', type=int, default=8)
    ap.add_argument('--kpol', default='nt')
    ap.add_argument('--vpol', default='nt')
    x = ap.parse_args()
    open(x.o, 'w').write(gen(x.nw, x.kpol, x.vpol))
```
